```python
import torch

def _softmax(x, axis=-1):
    return torch.softmax(x, dim=axis)
def _gelu(x):
    return torch.nn.functional.gelu(x, approximate="tanh")
def _silu(x):
    return torch.nn.functional.silu(x)
def _sigmoid(x):
    return torch.sigmoid(x)
def _layernorm(x, axis=-1, eps=1e-5):
    m = x.mean(dim=axis, keepdim=True)
    v = x.var(dim=axis, keepdim=True, unbiased=False)
    return (x - m) / torch.sqrt(v + eps)
def _scatter_add(tgt, idx, src, axis=0):
    return tgt.clone().index_add_(axis, idx, src)
def _segment_sum(src, seg, n):
    out = torch.zeros((n,) + src.shape[1:], dtype=src.dtype)
    return out.index_add_(0, seg, src)
def _pad(x, pw):
    flat = tuple(v for pair in reversed(pw) for v in pair)
    return torch.nn.functional.pad(x, flat)

kernel_name = 'concat_heads__mha_block_cached__gqa_block_cached__near_ridge'

def setup_inputs():

    _w = (lambda a: (lambda t: t.to(torch.bfloat16) if t.is_floating_point() else t)(torch.as_tensor(a)))
    def _A_setup():
        B, Sq, D = 16, 160, 512
        H, Sk, Dh = 32, 512, 128
        return {
            "x": _w((lambda *s: torch.randn(*s, dtype=torch.bfloat16) * 0.8)(B, Sq, D)),
            "k_cache": _w((lambda *s: torch.randn(*s, dtype=torch.bfloat16) * 0.8)(B, H, Sk, Dh)),
            "v_cache": _w((lambda *s: torch.randn(*s, dtype=torch.bfloat16) * 0.05)(B, H, Sk, Dh)),
            "wq": _w((lambda *s: torch.randn(*s, dtype=torch.bfloat16) * 0.8)(D, H * Dh) * (D ** -0.5)),
            "wo": _w((lambda *s: torch.randn(*s, dtype=torch.bfloat16) * 0.05)(H * Dh, D) * ((H * Dh) ** -0.5)),
        }
    _A_in = _A_setup()

    def _B_setup():
        B, Sq, D = 16, 160, 512
        Hq, Hkv, Sk, Dh = 32, 32, 512, 128
        assert Hq % Hkv == 0, (Hq, Hkv)
        return {
            "x": _w((lambda *s: torch.randn(*s, dtype=torch.bfloat16) * 0.8)(B, Sq, D)),
            "k_cache": _w((lambda *s: torch.randn(*s, dtype=torch.bfloat16) * 0.8)(B, Hkv, Sk, Dh)),
            "v_cache": _w((lambda *s: torch.randn(*s, dtype=torch.bfloat16) * 0.05)(B, Hkv, Sk, Dh)),
            "wq": _w((lambda *s: torch.randn(*s, dtype=torch.bfloat16) * 0.8)(D, Hq * Dh) * (D ** -0.5)),
            "wo": _w((lambda *s: torch.randn(*s, dtype=torch.bfloat16) * 0.05)(Hq * Dh, D) * ((Hq * Dh) ** -0.5)),
        }
    _B_in = _B_setup()

    return {
        "A_x": _A_in["x"],
        "A_k_cache": _A_in["k_cache"],
        "A_v_cache": _A_in["v_cache"],
        "A_wq": _A_in["wq"],
        "A_wo": _A_in["wo"],
        "B_x": _B_in["x"],
        "B_k_cache": _B_in["k_cache"],
        "B_v_cache": _B_in["v_cache"],
        "B_wq": _B_in["wq"],
        "B_wo": _B_in["wo"],
    }

def reference(A_x, A_k_cache, A_v_cache, A_wq, A_wo, B_x, B_k_cache, B_v_cache, B_wq, B_wo):
    def _A_ref(x, k_cache, v_cache, wq, wo):
        B, Sq, D = x.shape
        H, Dh = 32, 128
        q = (lambda x, *d: x.permute(*d))((x @ wq).reshape(B, Sq, H, Dh), 0, 2, 1, 3)
        scores = torch.einsum("bhqd,bhkd->bhqk", q, k_cache) * (Dh ** -0.5)
        p = _softmax(scores, axis=-1)
        o = torch.einsum("bhqk,bhkd->bhqd", p, v_cache)
        return (lambda x, *d: x.permute(*d))(o, 0, 2, 1, 3).reshape(B, Sq, H * Dh) @ wo

    def _B_ref(x, k_cache, v_cache, wq, wo):
        B, Sq, D = x.shape
        Hq, Dh = 32, 128
        Hkv = k_cache.shape[1]
        rep = Hq // Hkv
        q = (lambda x, *d: x.permute(*d))((x @ wq).reshape(B, Sq, Hq, Dh), 0, 2, 1, 3)
        k = (lambda x, n, axis: torch.repeat_interleave(x, n, dim=axis))(k_cache, rep, axis=1)
        v = (lambda x, n, axis: torch.repeat_interleave(x, n, dim=axis))(v_cache, rep, axis=1)
        scores = torch.einsum("bhqd,bhkd->bhqk", q, k) * (Dh ** -0.5)
        p = _softmax(scores, axis=-1)
        o = torch.einsum("bhqk,bhkd->bhqd", p, v)
        return (lambda x, *d: x.permute(*d))(o, 0, 2, 1, 3).reshape(B, Sq, Hq * Dh) @ wo

    a = _A_ref(A_x, A_k_cache, A_v_cache, A_wq, A_wo)
    b = _B_ref(B_x, B_k_cache, B_v_cache, B_wq, B_wo)
    return torch.concatenate([a, b], axis=-1)
```

```python
import sys
KNAME = "concat_heads__mha_block_cached__gqa_block_cached__near_ridge_kernel"
WS_BYTES = 290455552

def wrap(body, grid, block, lds, vgpr=256, agpr=0, nst=4):
    acc = vgpr
    tot = vgpr + agpr
    return f"""; @launch grid=({grid},1,1) block=({block},1,1) lds={lds}
.amdgcn_target "amdgcn-amd-amdhsa--gfx950"
.text
.globl {KNAME}
.p2align 8
.type {KNAME},@function
{KNAME}:
    s_cmp_ge_u32 s2, {grid}
    s_cbranch_scc1 L_end
    s_memrealtime s[80:81]
    s_memtime s[82:83]
    s_load_dwordx4 s[4:7], s[0:1], 8      ; A_k, A_v
    s_load_dwordx4 s[8:11], s[0:1], 48    ; B_k, B_v
    s_load_dwordx2 s[12:13], s[0:1], 96   ; ws
    s_waitcnt lgkmcnt(0)
{body}
    s_waitcnt vmcnt(0) lgkmcnt(0)
    s_barrier
    s_memrealtime s[84:85]
    s_memtime s[86:87]
    s_waitcnt lgkmcnt(0)
    s_mov_b32 s16, s12
    s_mov_b32 s17, s13
    s_mov_b32 s18, {WS_BYTES}
    s_mov_b32 s19, 0x20000
    v_mov_b32 v2, s80
    v_mov_b32 v3, s81
    v_mov_b32 v4, s84
    v_mov_b32 v5, s85
    v_mov_b32 v6, s82
    v_mov_b32 v7, s83
    v_mov_b32 v8, s86
    v_mov_b32 v9, s87
    s_mul_i32 s20, s2, {nst*8}
    s_add_u32 s20, s20, {WS_BYTES - grid*nst*8}
    v_mov_b32 v1, s20
    v_cmp_eq_u32 vcc, 0, v0
    s_and_saveexec_b64 s[22:23], vcc
    s_cbranch_execz L_end
    buffer_store_dwordx4 v[2:5], v1, s[16:19], 0 offen
    buffer_store_dwordx4 v[6:9], v1, s[16:19], 0 offen offset:16
    s_waitcnt vmcnt(0)
L_end:
    s_endpgm
.section .rodata,"a"
.p2align 6
.amdhsa_kernel {KNAME}
  .amdhsa_next_free_vgpr {tot}
  .amdhsa_next_free_sgpr 96
  .amdhsa_accum_offset {acc}
  .amdhsa_group_segment_fixed_size 0
  .amdhsa_kernarg_size 104
  .amdhsa_user_sgpr_count 2
  .amdhsa_user_sgpr_kernarg_segment_ptr 1
  .amdhsa_system_sgpr_workgroup_id_x 1
.end_amdhsa_kernel
"""

def srd_kv():
    return """
    s_lshr_b32 s24, s2, 7
    s_and_b32 s25, s2, 127
    s_cmp_eq_u32 s24, 0
    s_cselect_b32 s28, s4, s8
    s_cselect_b32 s29, s5, s9
    s_cselect_b32 s32, s6, s10
    s_cselect_b32 s33, s7, s11
    s_mov_b32 s30, 0x4000000
    s_mov_b32 s31, 0x20000
    s_mov_b32 s34, 0x4000000
    s_mov_b32 s35, 0x20000
    s_lshl_b32 s26, s25, 19
    v_lshrrev_b32 v10, 6, v0
    s_nop 0
    v_readfirstlane_b32 s27, v10
    v_and_b32 v11, 63, v0
    v_lshlrev_b32 v11, 4, v11      ; lane*16
"""

def stream(depth, nt, nwaves=4, nmfma=0, shape=32, ring_kb=128):
    per_wave = 1024 // nwaves
    b = srd_kv()
    ringw = ring_kb * 1024 // nwaves
    b += f"""
    s_mul_i32 s36, s27, {ringw}
    s_mov_b32 s37, 0
    s_lshl_b32 s38, s27, 10
    s_add_u32 s38, s38, s26
    s_mov_b32 s39, 0
"""
    if nmfma:
        b += """
    buffer_load_dwordx4 v[16:19], v11, s[28:31], s38 offen
    buffer_load_dwordx4 v[20:23], v11, s[28:31], s38 offen offset:1024
    buffer_load_dwordx4 v[24:27], v11, s[28:31], s38 offen offset:2048
    buffer_load_dwordx4 v[28:31], v11, s[28:31], s38 offen offset:3072
    s_waitcnt vmcnt(0)
"""
        for i in range(64):
            b += f"    v_mov_b32 v{64+i}, 0\n"
    ntf = " nt" if nt else ""
    mi = 0
    b += "L_loop:\n"
    def mf(n):
        nonlocal mi
        s = ""
        for _ in range(n):
            if shape == 32:
                acc = 64 + 16 * (mi % 4)
                s += f"    v_mfma_f32_32x32x16_bf16 v[{acc}:{acc+15}], v[{16+4*(mi%2)}:{19+4*(mi%2)}], v[{24+4*((mi//2)%2)}:{27+4*((mi//2)%2)}], v[{acc}:{acc+15}]\n"
                mi += 1
            else:
                for _ in range(2):
                    acc = 64 + 4 * (mi % 16)
                    s += f"    v_mfma_f32_16x16x32_bf16 v[{acc}:{acc+3}], v[{16+4*(mi%2)}:{19+4*(mi%2)}], v[{24+4*((mi//2)%2)}:{27+4*((mi//2)%2)}], v[{acc}:{acc+3}]\n"
                    mi += 1
        return s
    if depth:
        b += f"""
    s_add_u32 s40, s36, s37
    s_mov_b32 m0, s40
    s_add_u32 s37, s37, 2048
    buffer_load_dwordx4 v11, s[28:31], s38 offen{ntf} lds
"""
    b += mf(nmfma // 2)
    if depth:
        b += f"""
    s_add_u32 m0, m0, 1024
    s_and_b32 s37, s37, {ringw-1}
    buffer_load_dwordx4 v11, s[32:35], s38 offen{ntf} lds
    s_add_u32 s38, s38, {1024*nwaves}
"""
    b += mf(nmfma - nmfma // 2)
    if depth:
        b += f"    s_waitcnt vmcnt({depth})\n"
    b += f"""
    s_add_u32 s39, s39, 1
    s_cmp_lt_u32 s39, {per_wave//2}
    s_cbranch_scc1 L_loop
"""
    return wrap(b, 256, 64 * nwaves, ring_kb * 1024)

if __name__ == "__main__":
    for d in (8, 16, 30):
        for nt in (0, 1):
            open(f"stream_d{d}_nt{nt}.s", "w").write(stream(d, nt))
    open("stream8w_d16_nt1.s", "w").write(stream(16, 1, nwaves=8))
    open("stream8w_d16_nt0.s", "w").write(stream(16, 0, nwaves=8))
    open("mfma32.s", "w").write(stream(0, 0, nmfma=20, shape=32))
    open("mfma16.s", "w").write(stream(0, 0, nmfma=20, shape=16))
    open("both32_d30_nt1.s", "w").write(stream(30, 1, nmfma=20, shape=32))
    open("both16_d30_nt1.s", "w").write(stream(30, 1, nmfma=20, shape=16))
    open("both32_d30_nt0.s", "w").write(stream(30, 0, nmfma=20, shape=32))
```

```python
from issue_gen import kernel, interleave, M32, M16
N=32
def add(i,k=0): return f"v_add_f32 v{160+10*k+i%8}, v{128+i%32}, v{128+(i+1+k)%32}"
def ex(i): return f"v_exp_f32 v{190+i%8}, v{128+i%32}"
def b128(i): return f"ds_read_b128 v[{32+4*(i%8)}:{35+4*(i%8)}], v12 offset:{1024*(i%8)}"
def tr(i,k=0): return f"ds_read_b64_tr_b16 v[{32+2*((2*i+k)%16)}:{33+2*((2*i+k)%16)}], v200 offset:{512*((2*i+k)%16)}"
def pkadd(i,k=0): return f"v_pk_add_f32 v[{160+10*k+2*(i%4)}:{161+10*k+2*(i%4)}], v[{128+2*(i%16)}:{129+2*(i%16)}], v[{128+2*((i+1+k)%16)}:{129+2*((i+1+k)%16)}]"
def dot2c(i,k=0): return f"v_dot2c_f32_bf16 v{160+10*k+i%8}, v{128+i%32}, v{128+(i+1)%32}"
def dot2(i,k=0): return f"v_dot2_f32_bf16 v{160+10*k+i%8}, v{128+i%32}, v{128+(i+1)%32}, v{160+10*k+i%8}"
def cvt(i,k=0): return f"v_cvt_pk_bf16_f32 v{160+10*k+i%8}, v{128+i%32}, v{128+(i+1+k)%32}"
T={}
def mk(name, f, M=M16, n=N): T[name]=interleave(M, n, {i: f(i) for i in range(n)})
mk("a_base", lambda i: [])
mk("b_b128", lambda i: [b128(i)])
mk("c_b128_add", lambda i: [b128(i), add(i)])
mk("c2_add_b128", lambda i: [add(i), b128(i)])
mk("d_tr", lambda i: [tr(i)])
mk("e_tr_add", lambda i: [tr(i), add(i)])
mk("f_tr_tr", lambda i: [tr(i,0), tr(i,1)])
mk("g_exp_wait", lambda i: [ex(i), "s_waitcnt lgkmcnt(0)"])
mk("h_add_wait", lambda i: [add(i), "s_waitcnt lgkmcnt(0)"])
mk("i_pkadd", lambda i: [pkadd(i)])
mk("j_pkadd2", lambda i: [pkadd(i,0), pkadd(i,1)])
mk("k_dot2c", lambda i: [dot2c(i)])
mk("l_dot2c2", lambda i: [dot2c(i,0), dot2c(i,1)])
mk("m_cvt2", lambda i: [cvt(i,0), cvt(i,1)])
mk("n_cvt_add", lambda i: [cvt(i,0), add(i,1)])
mk("o_exp_alt_b128", lambda i: [ex(i)] if i%2 else [b128(i)])
mk("p_exp_alt_b128add", lambda i: [ex(i)] if i%2 else [b128(i), add(i)])
mk("q_exp_alt_trtr", lambda i: [ex(i)] if i%2 else [tr(i,0), tr(i,1)])
mk("r_tr_exp", lambda i: [tr(i), ex(i)])
mk("s_b128_exp", lambda i: [b128(i), ex(i)])
mk("t_dot2", lambda i: [dot2(i)])
mk("u_salu2", lambda i: ["s_add_u32 s50, s50, 1", "s_add_u32 s51, s51, 1"])
mk("v_salu3", lambda i: ["s_add_u32 s50, s50, 1", "s_add_u32 s51, s51, 1", "s_add_u32 s52, s52, 1"])
mk("w_exp_salu", lambda i: [ex(i), "s_add_u32 s51, s51, 1"])
mk("x_salu_exp", lambda i: ["s_add_u32 s51, s51, 1", ex(i)])
mk("y_m32_exp2_b128_add", lambda i: [ex(i), b128(i), ex(i+1), add(i)], M=M32, n=16)
mk("z_m32_exp2_tr_tr", lambda i: [ex(i), tr(i,0), ex(i+1), tr(i,1)], M=M32, n=16)
if __name__ == "__main__":
    for k,v in T.items():
        s = kernel(v, 200, nwaves=4)
        s = s.replace(".p2align 6\nL_loop:", "    v_and_b32 v200, 63, v0\n    v_lshlrev_b32 v200, 3, v200\n    v_add_u32 v200, s36, v200\n.p2align 6\nL_loop:")
        open(f"i2_{k}.s","w").write(s)
```

```python
from bench_gen import wrap, srd_kv
import sys

def M32(i, a=None, b=None):
    acc = 64 + 16 * (i % 4)
    a = a or f"v[{16+4*(i%2)}:{19+4*(i%2)}]"
    b = b or f"v[{24+4*((i//2)%2)}:{27+4*((i//2)%2)}]"
    return f"v_mfma_f32_32x32x16_bf16 v[{acc}:{acc+15}], {a}, {b}, v[{acc}:{acc+15}]"
def M16(i):
    acc = 64 + 4 * (i % 16)
    return f"v_mfma_f32_16x16x32_bf16 v[{acc}:{acc+3}], v[{16+4*(i%2)}:{19+4*(i%2)}], v[{24+4*((i//2)%2)}:{27+4*((i//2)%2)}], v[{acc}:{acc+3}]"

def kernel(body_lines, iters, nwaves=4, word3=0x20000, stride=0):
    b = srd_kv()
    b += f"""
    s_mul_i32 s36, s27, 16384
    s_lshl_b32 s38, s27, 10
    s_add_u32 s38, s38, s26
    s_mov_b32 s39, 0
    s_mov_b32 m0, s36
    buffer_load_dwordx4 v[16:19], v11, s[28:31], s38 offen
    buffer_load_dwordx4 v[20:23], v11, s[28:31], s38 offen offset:1024
    buffer_load_dwordx4 v[24:27], v11, s[28:31], s38 offen offset:2048
    buffer_load_dwordx4 v[28:31], v11, s[28:31], s38 offen offset:3072
    s_waitcnt vmcnt(0)
    v_add_u32 v12, s36, v11
    s_mov_b32 s44, s28
    s_or_b32 s45, s29, {stride<<16}
    s_mov_b32 s46, 0x400000
    s_mov_b32 s47, {word3}
    v_mov_b32 v13, s29
    v_add_co_u32 v14, vcc, s28, v11
    s_nop 1
    v_addc_co_u32 v15, vcc, 0, v13, vcc
"""
    for i in range(64):
        b += f"    v_mov_b32 v{64+i}, 0\n"
    for i in range(32):
        b += f"    v_mov_b32 v{128+i}, 0.5\n"
    b += ".p2align 6\nL_loop:\n"
    for l in body_lines:
        b += "    " + l + "\n"
    b += f"""
    s_add_u32 s39, s39, 1
    s_cmp_lt_u32 s39, {iters}
    s_cbranch_scc1 L_loop
"""
    return wrap(b, 256, 64 * nwaves, 128 * 1024)

DMA = "buffer_load_dwordx4 v11, s[28:31], s38 offen lds"
def interleave(M, n, fillers):
    out = []
    for i in range(n):
        out.append(M(i))
        out += fillers.get(i, [])
    return out

tests = {}
N = 16
tests["a_m32"] = interleave(M32, N, {})
tests["b_m32_dma2"] = interleave(M32, N, {0: [DMA], 8: [DMA], 15: ["s_waitcnt vmcnt(20)"]})
tests["c_m32_dma4"] = interleave(M32, N, {0: [DMA], 4: [DMA], 8: [DMA], 12: [DMA], 15: ["s_waitcnt vmcnt(20)"]})
tests["d_m32_dma2pair"] = interleave(M32, N, {0: [DMA, DMA], 15: ["s_waitcnt vmcnt(20)"]})
tests["e_m32_gl2"] = interleave(M32, N, {0: ["global_load_lds_dwordx4 v11, s[28:29]"], 8: ["global_load_lds_dwordx4 v11, s[28:29]"], 15: ["s_waitcnt vmcnt(20)"]})
tests["f_m32_ld2"] = interleave(M32, N, {0: ["buffer_load_dwordx4 v[32:35], v11, s[28:31], s38 offen"], 8: ["buffer_load_dwordx4 v[36:39], v11, s[28:31], s38 offen"], 15: ["s_waitcnt vmcnt(20)"]})
tests["g_m32_off2"] = interleave(M32, N, {0: ["buffer_load_dwordx4 off, s[28:31], s38 lds"], 8: ["buffer_load_dwordx4 off, s[28:31], s38 lds"], 15: ["s_waitcnt vmcnt(20)"]})
tests["h_m32_dw2"] = interleave(M32, N, {0: ["buffer_load_dword v11, s[28:31], s38 offen lds"], 8: ["buffer_load_dword v11, s[28:31], s38 offen lds"], 15: ["s_waitcnt vmcnt(20)"]})
tests["i_m16"] = interleave(M16, 2*N, {})
tests["j_m16_dma2"] = interleave(M16, 2*N, {0: [DMA], 16: [DMA], 31: ["s_waitcnt vmcnt(20)"]})
tests["k_m16_dma4"] = interleave(M16, 2*N, {0: [DMA], 8: [DMA], 16: [DMA], 24: [DMA], 31: ["s_waitcnt vmcnt(20)"]})
tests["l_m32_ds16"] = interleave(M32, N, {i: [f"ds_read_b128 v[{32+4*(i%4)}:{35+4*(i%4)}], v12 offset:{1024*(i%8)}"] for i in range(N)})
tests["m_m16_ds16"] = interleave(M16, 2*N, {2*i: [f"ds_read_b128 v[{32+4*(i%4)}:{35+4*(i%4)}], v12 offset:{1024*(i%8)}"] for i in range(N)})
tests["n_m16_exp1"] = interleave(M16, 2*N, {i: [f"v_exp_f32 v{160+i%8}, v{128+i%32}"] for i in range(2*N)})
tests["o_m16_valu2"] = interleave(M16, 2*N, {i: [f"v_add_f32 v{160+i%8}, v{128+i%32}, v{128+(i+1)%32}", f"v_add_f32 v{170+i%8}, v{128+i%32}, v{128+(i+2)%32}"] for i in range(2*N)})
tests["p_m16_valu3"] = interleave(M16, 2*N, {i: [f"v_add_f32 v{160+i%8}, v{128+i%32}, v{128+(i+1)%32}", f"v_add_f32 v{170+i%8}, v{128+i%32}, v{128+(i+2)%32}", f"v_add_f32 v{180+i%8}, v{128+i%32}, v{128+(i+3)%32}"] for i in range(2*N)})
tests["q_m16_exp1valu1"] = interleave(M16, 2*N, {i: [f"v_exp_f32 v{160+i%8}, v{128+i%32}", f"v_add_f32 v{170+i%8}, v{128+i%32}, v{128+(i+2)%32}"] for i in range(2*N)})
tests["r_m16_exp1ds1"] = interleave(M16, 2*N, {i: [f"v_exp_f32 v{160+i%8}, v{128+i%32}", f"ds_read_b128 v[{32+4*(i%4)}:{35+4*(i%4)}], v12 offset:{1024*(i%8)}"] for i in range(2*N)})
tests["s_m16_valu2salu1"] = interleave(M16, 2*N, {i: [f"v_add_f32 v{160+i%8}, v{128+i%32}, v{128+(i+1)%32}", f"v_add_f32 v{170+i%8}, v{128+i%32}, v{128+(i+2)%32}", "s_add_u32 s50, s50, 1"] for i in range(2*N)})

if __name__ == "__main__":
    for sfx, nw in (("", 4), ("_8w", 8)):
        for k, v in tests.items():
            open(f"is_{k}{sfx}.s", "w").write(kernel(v, 200, nwaves=nw))
    print(" ".join(f"is_{k}.s" for k in tests))
```

```python
from issue_gen import kernel, interleave, M32, M16, DMA
from issue2_gen import add, ex, b128, tr, cvt
N=320
T={}
def mk(name, f, n=N): T[name]=interleave(M16, n, {i: f(i) for i in range(n)})
B=lambda i: ["s_barrier"] if i%80==10 else []
W=lambda i: ["s_waitcnt vmcnt(16)"] if i%80==9 else []
ST=lambda i: f"buffer_store_dwordx4 v[{128+4*(i%4)}:{131+4*(i%4)}], v201, s[16:19], 0 offen"
DW=lambda i: f"ds_write_b128 v12, v[{128+4*(i%4)}:{131+4*(i%4)}] offset:{1024*(i%8)}"
for bar,nm in ((lambda i: [], "nobar"), (B, "bar")):
    mk(f"a_base_{nm}", lambda i: bar(i))
    mk(f"b_dma8_{nm}", lambda i: W(i)+bar(i)+([DMA] if i%10==3 else []))
    mk(f"c_dma16_{nm}", lambda i: W(i)+bar(i)+([DMA] if i%5==3 else []))
    mk(f"d_tr40_{nm}", lambda i: bar(i)+([tr(i)] if i%2==1 else []))
    mk(f"e_trtr20_{nm}", lambda i: bar(i)+([tr(i,0),tr(i,1)] if i%4==1 else []))
    mk(f"f_b128_40_{nm}", lambda i: bar(i)+([b128(i)] if i%2==1 else []))
    mk(f"g_b128_80_{nm}", lambda i: bar(i)+([b128(i)]))
    mk(f"h_st4_{nm}", lambda i: W(i)+bar(i)+([ST(i)] if i%20==3 else []))
    mk(f"i_dsw8_{nm}", lambda i: bar(i)+([DW(i)] if i%10==3 else []))
    mk(f"j_dma8_tr40_{nm}", lambda i: W(i)+bar(i)+([DMA] if i%10==4 else [])+([tr(i)] if i%2==1 else []))
if __name__ == "__main__":
    for k,v in T.items():
        s = kernel(v, 20, nwaves=4)
        s = s.replace(".p2align 6\nL_loop:", """    v_and_b32 v200, 63, v0
    v_lshlrev_b32 v200, 3, v200
    v_add_u32 v200, s36, v200
    s_mov_b32 s16, s12
    s_mov_b32 s17, s13
    s_mov_b32 s18, 0x1000000
    s_mov_b32 s19, 0x20000
    s_lshl_b32 s20, s2, 12
    v_lshl_add_u32 v201, v0, 4, s20
    s_add_u32 m0, s36, 8192
    s_barrier
    s_memrealtime s[80:81]
    s_memtime s[82:83]
    s_waitcnt lgkmcnt(0)
.p2align 6
L_loop:""")
        open(f"i6_{k}.s","w").write(s)
```

```python
from bench_gen import wrap, srd_kv, WS_BYTES
def kern(nm, pre=0, depth=24, valu=0):
    b = srd_kv()
    b += """
    v_mov_b32 v95, 0
    s_mul_i32 s36, s27, 32768
    s_mov_b32 s37, 0
    s_lshl_b32 s38, s27, 10
    s_add_u32 s38, s38, s26
    s_mov_b32 s39, 0
"""
    for i in range(8):
        b += f"    buffer_load_dwordx4 v[{128+4*i}:{131+4*i}], v11, s[28:31], s38 offen offset:{(i%4)*1024} nt\n"
    b += "    s_waitcnt vmcnt(0)\n"
    for i in range(64): b += f"    v_mov_b32 v{16+i}, 0\n"
    mi=[0]
    def mf(n):
        s=""
        for _ in range(n):
            i=mi[0]; acc=16+4*((i//4)%16)
            s+=f"    v_mfma_f32_16x16x32_bf16 v[{acc}:{acc+3}], v[{128+4*(i%4)}:{131+4*(i%4)}], v[{144+4*((i+i//4)%4)}:{147+4*((i+i//4)%4)}], v[{acc}:{acc+3}]\n"
            if valu: s+=f"    v_exp_f32 v{100+i%8}, v{128+i%16}\n"
            mi[0]+=1
        return s
    if pre:
        b += f"    s_mov_b32 s41, 0\nL_pre:\n" + mf(64) + f"    s_add_u32 s41, s41, 1\n    s_cmp_lt_u32 s41, {pre}\n    s_cbranch_scc1 L_pre\n"
    b += "L_loop:\n    s_memrealtime s[50:51]\n"
    for p in range(4):
        b += f"""    s_add_u32 m0, s36, s37
    s_add_u32 s37, s37, 2048
    buffer_load_dwordx4 v11, s[28:31], s38 offen nt lds
""" + mf(nm) + f"""    s_add_u32 m0, m0, 1024
    s_and_b32 s37, s37, 32767
    buffer_load_dwordx4 v11, s[32:35], s38 offen nt lds
    s_add_u32 s38, s38, 4096
""" + mf(nm) + f"    s_waitcnt vmcnt({depth})\n"
    b += """    s_waitcnt lgkmcnt(0)
    s_mov_b32 m0, s39
    v_writelane_b32 v95, s50, m0
    s_add_u32 s39, s39, 1
    s_cmp_lt_u32 s39, 32
    s_cbranch_scc1 L_loop
"""
    s = wrap(b, 256, 256, 128*1024, nst=36)
    s = s.replace("    v_cmp_eq_u32 vcc, 0, v0\n", "    v_lshl_add_u32 v12, v0, 2, v1\n    v_cmp_gt_u32 vcc, 64, v0\n    s_and_saveexec_b64 s[22:23], vcc\n    s_cbranch_execz L_end\n    buffer_store_dword v95, v12, s[16:19], 0 offen offset:32\n    v_cmp_eq_u32 vcc, 0, v0\n")
    return s
for nm in (0, 10, 13, 16):
    open(f"ds_m{nm}.s","w").write(kern(nm))
open("ds_m13v.s","w").write(kern(13, valu=1))
open("ds_m13v_pre.s","w").write(kern(13, valu=1, pre=16))
```
